```python
import torch

def _softmax(x, axis=-1):
    return torch.softmax(x, dim=axis)
def _gelu(x):
    return torch.nn.functional.gelu(x, approximate="tanh")
def _silu(x):
    return torch.nn.functional.silu(x)
def _sigmoid(x):
    return torch.sigmoid(x)
def _layernorm(x, axis=-1, eps=1e-5):
    m = x.mean(dim=axis, keepdim=True)
    v = x.var(dim=axis, keepdim=True, unbiased=False)
    return (x - m) / torch.sqrt(v + eps)
def _scatter_add(tgt, idx, src, axis=0):
    return tgt.clone().index_add_(axis, idx, src)
def _segment_sum(src, seg, n):
    out = torch.zeros((n,) + src.shape[1:], dtype=src.dtype)
    return out.index_add_(0, seg, src)
def _pad(x, pw):
    flat = tuple(v for pair in reversed(pw) for v in pair)
    return torch.nn.functional.pad(x, flat)

kernel_name = 'concat_heads__gqa_block_cached__mha_block_cached__near_ridge'

def setup_inputs():

    _w = (lambda a: (lambda t: t.to(torch.bfloat16) if t.is_floating_point() else t)(torch.as_tensor(a)))
    def _A_setup():
        B, Sq, D = 16, 80, 448
        Hq, Hkv, Sk, Dh = 16, 8, 1024, 256
        assert Hq % Hkv == 0, (Hq, Hkv)
        return {
            "x": _w((lambda *s: torch.randn(*s, dtype=torch.bfloat16) * 0.8)(B, Sq, D)),
            "k_cache": _w((lambda *s: torch.randn(*s, dtype=torch.bfloat16) * 0.8)(B, Hkv, Sk, Dh)),
            "v_cache": _w((lambda *s: torch.randn(*s, dtype=torch.bfloat16) * 0.05)(B, Hkv, Sk, Dh)),
            "wq": _w((lambda *s: torch.randn(*s, dtype=torch.bfloat16) * 0.8)(D, Hq * Dh) * (D ** -0.5)),
            "wo": _w((lambda *s: torch.randn(*s, dtype=torch.bfloat16) * 0.05)(Hq * Dh, D) * ((Hq * Dh) ** -0.5)),
        }
    _A_in = _A_setup()

    def _B_setup():
        B, Sq, D = 16, 80, 448
        H, Sk, Dh = 16, 1024, 256
        return {
            "x": _w((lambda *s: torch.randn(*s, dtype=torch.bfloat16) * 0.8)(B, Sq, D)),
            "k_cache": _w((lambda *s: torch.randn(*s, dtype=torch.bfloat16) * 0.8)(B, H, Sk, Dh)),
            "v_cache": _w((lambda *s: torch.randn(*s, dtype=torch.bfloat16) * 0.05)(B, H, Sk, Dh)),
            "wq": _w((lambda *s: torch.randn(*s, dtype=torch.bfloat16) * 0.8)(D, H * Dh) * (D ** -0.5)),
            "wo": _w((lambda *s: torch.randn(*s, dtype=torch.bfloat16) * 0.05)(H * Dh, D) * ((H * Dh) ** -0.5)),
        }
    _B_in = _B_setup()

    return {
        "A_x": _A_in["x"],
        "A_k_cache": _A_in["k_cache"],
        "A_v_cache": _A_in["v_cache"],
        "A_wq": _A_in["wq"],
        "A_wo": _A_in["wo"],
        "B_x": _B_in["x"],
        "B_k_cache": _B_in["k_cache"],
        "B_v_cache": _B_in["v_cache"],
        "B_wq": _B_in["wq"],
        "B_wo": _B_in["wo"],
    }

def reference(A_x, A_k_cache, A_v_cache, A_wq, A_wo, B_x, B_k_cache, B_v_cache, B_wq, B_wo):
    def _A_ref(x, k_cache, v_cache, wq, wo):
        B, Sq, D = x.shape
        Hq, Dh = 16, 256
        Hkv = k_cache.shape[1]
        rep = Hq // Hkv
        q = (lambda x, *d: x.permute(*d))((x @ wq).reshape(B, Sq, Hq, Dh), 0, 2, 1, 3)
        k = (lambda x, n, axis: torch.repeat_interleave(x, n, dim=axis))(k_cache, rep, axis=1)
        v = (lambda x, n, axis: torch.repeat_interleave(x, n, dim=axis))(v_cache, rep, axis=1)
        scores = torch.einsum("bhqd,bhkd->bhqk", q, k) * (Dh ** -0.5)
        p = _softmax(scores, axis=-1)
        o = torch.einsum("bhqk,bhkd->bhqd", p, v)
        return (lambda x, *d: x.permute(*d))(o, 0, 2, 1, 3).reshape(B, Sq, Hq * Dh) @ wo

    def _B_ref(x, k_cache, v_cache, wq, wo):
        B, Sq, D = x.shape
        H, Dh = 16, 256
        q = (lambda x, *d: x.permute(*d))((x @ wq).reshape(B, Sq, H, Dh), 0, 2, 1, 3)
        scores = torch.einsum("bhqd,bhkd->bhqk", q, k_cache) * (Dh ** -0.5)
        p = _softmax(scores, axis=-1)
        o = torch.einsum("bhqk,bhkd->bhqd", p, v_cache)
        return (lambda x, *d: x.permute(*d))(o, 0, 2, 1, 3).reshape(B, Sq, H * Dh) @ wo

    a = _A_ref(A_x, A_k_cache, A_v_cache, A_wq, A_wo)
    b = _B_ref(B_x, B_k_cache, B_v_cache, B_wq, B_wo)
    return torch.concatenate([a, b], axis=-1)
```

```python
import re
from collections import defaultdict

class Ins:
    __slots__ = ('text', 'lds', 'op', 'rd', 'wr', 'kind', 'info')
    def __init__(self, text, lds=None):
        self.text = text
        self.lds = lds
        self.op = None

_REG = re.compile(r'^(-|\|)?(v|a|s)(\d+)\|?$')
_RNG = re.compile(r'^(v|a|s)\[(\d+):(\d+)\]$')

def regs(tok):
    tok = tok.strip()
    if tok.startswith('-'):
        tok = tok[1:]
    if tok.startswith('abs(') and tok.endswith(')'):
        tok = tok[4:-1]
    m = _RNG.match(tok)
    if m:
        return [(m.group(1), i) for i in range(int(m.group(2)), int(m.group(3)) + 1)]
    m = _REG.match(tok)
    if m:
        return [(m.group(2), int(m.group(3)))]
    if tok == 'vcc':
        return [('vcc', 0)]
    if tok == 'exec':
        return [('exec', 0)]
    if tok == 'm0':
        return [('m0', 0)]
    return []

TRANS = ('v_exp_f32', 'v_log_f32', 'v_rcp_f32', 'v_rsq_f32', 'v_sqrt_f32')
RMW = ('v_fmac_f32', 'v_fmac_f32_e32')
SCC_W = ('s_add_u32', 's_addc_u32', 's_sub_u32', 's_and_b32', 's_or_b32', 's_xor_b32', 's_lshl_b32', 's_lshr_b32',
         's_and_b64', 's_or_b64', 's_min_u32', 's_max_u32', 's_bitcmp1_b32', 's_bitcmp0_b32', 's_and_saveexec_b64',
         's_add_i32', 's_sub_i32', 's_bfe_u32', 's_andn2_b64', 's_lshl_b64', 's_addk_i32')
SCC_R = ('s_addc_u32', 's_cselect_b32', 's_cselect_b64', 's_cbranch_scc0', 's_cbranch_scc1')

def parse(ins):
    if ins.op is not None:
        return ins
    t = ins.text.split(';')[0].strip()
    parts = t.split(None, 1)
    op = parts[0]
    rest = parts[1] if len(parts) > 1 else ''
    ops = [o.strip() for o in rest.split(',')] if rest else []
    mods = ''
    if ops:
        last = ops[-1].split()
        if len(last) > 1:
            ops[-1] = last[0]
            mods = ' '.join(last[1:])
    ins.op = op
    rd, wr, info = [], [], {}
    kind = None
    if op.endswith(':'):
        kind = 'label'
    elif op.startswith('v_mfma'):
        kind = 'mfma'
        wr = regs(ops[0]); info['A'] = regs(ops[1]); info['B'] = regs(ops[2]); info['C'] = regs(ops[3])
        rd = info['A'] + info['B'] + info['C']
        info['passes'] = 4 if '16x16x32' in op else 8
    elif op.startswith('v_cmp'):
        kind = 'valu'
        wr = regs(ops[0]); rd = [r for o in ops[1:] for r in regs(o)]
    elif op.startswith('v_readfirstlane') or op.startswith('v_readlane'):
        kind = 'valu'; info['rfl'] = True
        wr = regs(ops[0]); rd = [r for o in ops[1:] for r in regs(o)]
    elif op.startswith('v_permlane'):
        kind = 'valu'; info['perm'] = True
        wr = regs(ops[0]) + regs(ops[1]); rd = list(wr)
    elif op.startswith('v_'):
        kind = 'valu'
        wr = regs(ops[0]); rd = [r for o in ops[1:] for r in regs(o)]
        if op in RMW:
            rd += wr
        if op.split('_e')[0] in TRANS or op in TRANS:
            info['trans'] = True
        if 'dpp' in op or 'row_' in mods or 'quad_perm' in mods:
            info['dpp'] = True
        if op.startswith('v_cndmask') and len(ops) == 3:
            rd += [('vcc', 0)]
        if '_co_' in op:
            wr = regs(ops[0]) + regs(ops[1]); rd = [r for o in ops[2:] for r in regs(o)]
    elif op.startswith('ds_read') or op.startswith('ds_bpermute'):
        kind = 'ds'; info['load'] = True
        wr = regs(ops[0]); rd = [r for o in ops[1:] for r in regs(o)]
    elif op.startswith('ds_write'):
        kind = 'ds'
        rd = [r for o in ops for r in regs(o)]
    elif op.startswith('buffer_load') or op.startswith('global_load'):
        kind = 'vmem'
        if re.search(r'\blds\b', mods):
            info['dma'] = True
            rd = [r for o in ops for r in regs(o)] + [('m0', 0)]
        else:
            info['load'] = True
            wr = regs(ops[0]); rd = [r for o in ops[1:] for r in regs(o)]
    elif op.startswith('buffer_store') or op.startswith('global_store'):
        kind = 'vmem'; info['store'] = True
        rd = [r for o in ops for r in regs(o)]
        info['data'] = regs(ops[0]) if op.startswith('buffer') else regs(ops[1])
        info['wide'] = ('x4' in op or 'x3' in op)
    elif op.startswith('buffer_atomic') or op.startswith('global_atomic'):
        kind = 'vmem'
        rd = [r for o in ops for r in regs(o)]
        if 'sc0' in mods:
            info['load'] = True; wr = regs(ops[0])
    elif op in ('buffer_wbl2', 'buffer_inv'):
        kind = 'vmem'
    elif op == 's_waitcnt':
        kind = 'wait'
        m = re.search(r'vmcnt\((\d+)\)', t); info['vm'] = int(m.group(1)) if m else None
        m = re.search(r'lgkmcnt\((\d+)\)', t); info['lgkm'] = int(m.group(1)) if m else None
    elif op == 's_barrier':
        kind = 'barrier'
    elif op == 's_nop':
        kind = 'nop'; info['n'] = int(ops[0]) + 1
    elif op.startswith('s_load') or op in ('s_memtime', 's_memrealtime'):
        kind = 'smem'; info['load'] = True
        wr = regs(ops[0]); rd = [r for o in ops[1:] for r in regs(o)]
    elif op.startswith('s_cbranch') or op in ('s_branch', 's_endpgm', 's_sleep', 's_setprio'):
        kind = 'salu'
        if 'vcc' in op: rd = [('vcc', 0)]
        if 'exec' in op: rd = [('exec', 0)]
    elif op.startswith('s_cmp') or op.startswith('s_bitcmp'):
        kind = 'salu'
        rd = [r for o in ops for r in regs(o)]
    elif op.startswith('s_'):
        kind = 'salu'
        wr = regs(ops[0]); rd = [r for o in ops[1:] for r in regs(o)]
        if op in ('s_addk_i32',):
            rd += wr
        if 'saveexec' in op:
            wr += [('exec', 0)]; rd += [('exec', 0)]
    else:
        raise ValueError('unparsed: ' + t)
    ins.rd, ins.wr, ins.kind, ins.info = rd, wr, kind, info
    return ins


def check_wave(trace, name):
    errs = []
    ws = 0
    lastw = {}
    store_war = {}
    vmq, lgq = [], []
    pend = {}
    epoch = 0
    acc = []
    def err(i, msg):
        errs.append(f'[{name}] #{i} "{trace[i].text.strip()}": {msg}')
    for i, ins in enumerate(trace):
        parse(ins)
        k, info = ins.kind, ins.info
        if k == 'label':
            continue
        if k == 'wait':
            for cnt, q, nm in ((info['vm'], vmq, 'vm'), (info['lgkm'], lgq, 'lgkm')):
                if cnt is None:
                    continue
                if nm == 'lgkm' and cnt > 0 and any(e.get('smem') for e in q):
                    err(i, 'counted lgkmcnt with SMEM outstanding')
                while len(q) > cnt:
                    e = q.pop(0)
                    for r in e['regs']:
                        pend.pop(r, None)
                    if e.get('acc') is not None:
                        e['acc']['done'] = epoch
                        e['acc']['donepos'] = i
            ws += 1
            continue
        if k == 'barrier':
            epoch += 1
            ws += 1
            continue
        if k == 'nop':
            ws += info['n']
            continue
        touched = set(ins.rd) | set(ins.wr)
        for r in touched:
            if r in pend:
                err(i, f'register {r} still pending on {pend[r]}')
        def need(r, n, why):
            lw = lastw.get(r)
            if lw is not None and ws - lw[0] < n:
                err(i, f'{why}: needs {n} wait states after #{lw[3]} "{trace[lw[3]].text.strip()}" on {r}, has {ws - lw[0]}')
        for r in touched:
            lw = lastw.get(r)
            if lw is None:
                continue
            pk = lw[1]
            if pk == 'mfma':
                long_n = {4: 8, 8: 12}[lw[2]['passes']]
                if k == 'mfma':
                    if r in info['A'] or r in info['B']:
                        need(r, long_n, 'mfma D -> mfma A/B')
                    elif r in info['C']:
                        if info['C'] != lw[2]['D']:
                            need(r, long_n - 2, 'mfma D -> overlapping C')
                else:
                    need(r, long_n, 'mfma D -> non-mfma access')
            elif pk == 'valu' and r in ins.rd:
                isv = r[0] in ('v', 'a')
                if isv and k == 'mfma':
                    need(r, 2, 'valu -> mfma')
                if isv and info.get('perm'):
                    need(r, 2, 'valu -> permlane')
                if isv and info.get('dpp'):
                    need(r, 2, 'valu -> dpp')
                if isv and info.get('rfl'):
                    need(r, 1, 'valu -> readlane')
                if isv and lw[2].get('trans') and k in ('valu',) and not info.get('trans'):
                    need(r, 1, 'trans -> valu')
                if isv and lw[2].get('trans') and k in ('ds', 'vmem'):
                    need(r, 1, 'trans -> mem')
                if not isv and k == 'vmem':
                    need(r, 5, 'valu sgpr -> vmem')
                if not isv and k == 'valu':
                    need(r, 2, 'valu sgpr -> valu const')
            elif pk == 'salu' and r == ('m0', 0) and info.get('dma'):
                need(r, 1, 'm0 -> dma')
        if k == 'valu' or info.get('load'):
            for r in ins.wr:
                if r in store_war and ws - store_war[r] < 2:
                    err(i, f'wide store data {r} overwritten too early')
        if k == 'vmem' and info.get('store') and info.get('wide'):
            for r in info['data']:
                store_war[r] = ws + 1
        a = None
        if ins.lds is not None:
            lk, lo, hi, tag = ins.lds
            a = dict(kind=lk, lo=lo, hi=hi, tag=tag, issue=epoch, done=None, donepos=None, wave=name, pos=i, text=ins.text.strip())
            acc.append(a)
        if k == 'vmem':
            dst = ins.wr if info.get('load') else []
            vmq.append(dict(regs=list(dst), acc=a if info.get('dma') else None))
            if len(vmq) > 63:
                e = vmq.pop(0)
                for r in e['regs']:
                    pend.pop(r, None)
                if e.get('acc') is not None:
                    e['acc']['done'] = epoch; e['acc']['donepos'] = i
            for r in dst:
                pend[r] = 'vm'
            if ins.lds is None and info.get('dma'):
                err(i, 'DMA without LDS annotation')
        elif k == 'ds':
            dst = ins.wr if info.get('load') else []
            lgq.append(dict(regs=list(dst), acc=a))
            if len(lgq) > 15:
                e = lgq.pop(0)
                for r in e['regs']:
                    pend.pop(r, None)
                if e.get('acc') is not None:
                    e['acc']['done'] = epoch; e['acc']['donepos'] = i
            for r in dst:
                pend[r] = 'lgkm'
            if ins.lds is None and not ins.op.startswith('ds_bpermute'):
                err(i, 'DS op without LDS annotation')
        elif k == 'smem':
            lgq.append(dict(regs=list(ins.wr), smem=True))
            for r in ins.wr:
                pend[r] = 'lgkm'
        ws += 1
        if k == 'mfma':
            d = dict(passes=info['passes'], D=list(ins.wr))
            for r in ins.wr:
                lastw[r] = (ws, 'mfma', d, i)
        elif k in ('valu', 'salu'):
            for r in ins.wr:
                lastw[r] = (ws, k, info, i)
        else:
            for r in ins.wr:
                lastw.pop(r, None)
    for a in acc:
        if a['done'] is None:
            a['done'] = 10 ** 9; a['donepos'] = 10 ** 9
    return errs, acc, epoch


def check_lds(accs_by_wave, page=1024, limit=163840):
    errs = []
    pages = defaultdict(list)
    for accs in accs_by_wave:
        merged = {}
        out = []
        for a in accs:
            if a['kind'] != 'r':
                out.append(a)
                continue
            key = (a['lo'], a['hi'], a['tag'], a['issue'], a['done'])
            m = merged.get(key)
            if m is None:
                m = dict(a); merged[key] = m; out.append(m)
            else:
                m['pos'] = min(m['pos'], a['pos']); m['donepos'] = max(m['donepos'], a['donepos'])
        for a in out:
            if a['hi'] > limit or a['lo'] < 0:
                errs.append(f'LDS range out of allocation: {a}')
            for p in range(a['lo'] // page, (a['hi'] - 1) // page + 1):
                pages[p].append(a)
    def before(x, y):
        if x['wave'] == y['wave']:
            if x['kind'] != 'dma' and y['kind'] != 'dma':
                return x['pos'] < y['pos']
            return x['donepos'] < y['pos']
        return x['done'] < y['issue']
    seen = set()
    for p, lst in pages.items():
        writes = [a for a in lst if a['kind'] != 'r']
        reads = [a for a in lst if a['kind'] == 'r']
        def ov(x, y):
            return x['lo'] < y['hi'] and y['lo'] < x['hi']
        for i, x in enumerate(writes):
            for y in writes[i + 1:]:
                if ov(x, y) and not before(x, y) and not before(y, x):
                    key = (id(x), id(y))
                    if key not in seen:
                        seen.add(key); errs.append(f'LDS W/W race:\n   {x}\n   {y}')
        for r in reads:
            last = None
            for x in writes:
                if not ov(x, r):
                    continue
                if before(x, r):
                    if last is None or before(last, x):
                        last = x
                elif not before(r, x):
                    key = (id(x), id(r))
                    if key not in seen:
                        seen.add(key); errs.append(f'LDS R/W race:\n   W {x}\n   R {r}')
            if last is None:
                errs.append(f'LDS read of never-written page {p}: {r}')
            elif last['tag'] != r['tag']:
                key = ('tag', id(r), p)
                if key not in seen:
                    seen.add(key); errs.append(f'LDS tag mismatch page {p}: read expects {r["tag"]} got {last["tag"]}\n   W {last}\n   R {r}')
    return errs
```

```python
import sys, os
from asmlib import Ins, check_wave, check_lds

NAME = 'concat_heads__gqa_block_cached__mha_block_cached__near_ridge'
OPT = dict(kvpol='nt', debug=None)

def LK(r, p): return r * 32768 + p * 16384
def LV(r, p): return 65536 + r * 49152 + p * 16384
def LWQ(r, i): return LV(r, 1) + i * 8192
LW = [0, 28672, 106496, 135168]
LO = [106496, 65536]
LDS_BYTES = 163840

sK, sV, sX, sWQ, sWO, sWS = 's[8:11]', 's[12:15]', 's[16:19]', 's[20:23]', 's[24:27]', 's[28:31]'
S_W, S_R, S_G, S_B, S_HP, S_BR = 's58', 's59', 's60', 's61', 's62', 's63'
S_ROT14, S_ROT8 = 's64', 's65'
S_MK, S_MV = 's66', 's67'
S_KO, S_KO2, S_VO, S_VO2 = 's68', 's69', 's70', 's71'
S_C, S_T = 's72', 's73'
S_CNT = 's74'
S_T0, S_T1, S_T2, S_T3 = 's75', 's76', 's77', 's78'
S_WQB, S_DKS, S_WQA, S_WQC = 's86', 's87', 's88', 's89'
S_WOM, S_WOO = 's90', 's91'

V_KADDR, V_VADDR, V_KPAT, V_VPAT = 224, 228, 236, 244
V_L16, V_N, V_Q = 248, 249, 250
V_T = 251
V_S, V_P = 96, 120
V_M, V_THR, V_NMC, V_L0, V_L1, V_MX = 132, 135, 138, 141, 144, 147
V_TMP = 150
V_VF = 160
A_KF = 192
V_QADDR, V_WQPAT, V_QT = 192, 200, 204
A_QF = 168
V_WOA, V_WOB, V_OT = 196, 203, 210
WOPAT = [155, 156, 157, 158, 159, 251, 252]
A_OG = 160

LOG2E_16 = 0x3db8aa3b
T_RAW = 0x42b17218

def vr(b, n=1): return f'v{b}' if n == 1 else f'v[{b}:{b+n-1}]'
def ar(b, n=1): return f'a{b}' if n == 1 else f'a[{b}:{b+n-1}]'


class Em:
    def __init__(self, r, g, trace):
        self.out = []; self.r = r; self.g = g; self.trace = trace; self.rare = []
    def I(self, text, lds=None):
        self.out.append(Ins('  ' + text, lds))
    def L(self, name):
        self.out.append(Ins(name + ':'))
    def add(self, lst):
        self.out.extend(lst)

def mk(text, lds=None): return Ins('  ' + text, lds)

def merge(main, side, per=2, start=0):
    out = []; k = 0
    for i, m in enumerate(main):
        out.append(m)
        if i >= start:
            for _ in range(per):
                if k < len(side):
                    out.append(side[k]); k += 1
    out.extend(side[k:])
    return out

def mfma(d, a, b, c):
    return mk(f'v_mfma_f32_16x16x32_bf16 {d}, {a}, {b}, {c}')


def prologue(E):
    I = E.I
    I('s_cmp_ge_u32 s2, 256')
    I('s_cbranch_scc1 L_end')
    I('s_load_dwordx16 s[36:51], s[0:1], 0')
    I('s_load_dwordx4 s[52:55], s[0:1], 64')
    I('s_load_dwordx2 s[56:57], s[0:1], 96')
    I('v_lshrrev_b32 v1, 6, v0')
    I('v_and_b32 v0, 63, v0')
    I(f'v_readfirstlane_b32 {S_W}, v1')
    I(f's_and_b32 {S_HP}, s2, 7')
    I('s_lshr_b32 s4, s2, 3')
    I(f's_and_b32 {S_BR}, s4, 1')
    I(f's_lshr_b32 {S_B}, s4, 1')
    I(f's_lshr_b32 {S_R}, {S_W}, 1')
    I(f's_and_b32 {S_G}, {S_W}, 1')
    n, q = vr(V_N), vr(V_Q)
    I(f'v_and_b32 {n}, 15, v0')
    I(f'v_lshrrev_b32 {q}, 4, v0')
    I(f'v_lshlrev_b32 {vr(V_L16)}, 4, v0')
    I('v_lshrrev_b32 v2, 5, v0')
    I('v_and_b32 v3, 31, v0')
    I('v_lshlrev_b32 v3, 4, v3')
    I('v_lshlrev_b32 v4, 9, v2')
    I('v_lshlrev_b32 v5, 4, v2')
    I('v_xor_b32 v5, v5, v3')
    for i in range(8):
        I(f'v_xor_b32 v6, {32*i}, v5')
        I(f'v_add_u32 {vr(V_KPAT+i)}, v4, v6')
    I('v_lshlrev_b32 v5, 5, v2')
    I('v_xor_b32 v5, v5, v3')
    for i in range(4):
        I(f'v_xor_b32 v6, {64*i}, v5')
        I(f'v_add_u32 {vr(V_VPAT+i)}, v4, v6')
    I('s_waitcnt lgkmcnt(0)')
    I(f's_cmp_eq_u32 {S_BR}, 0')
    for dst, a, b in ((16, 36, 46), (8, 38, 48), (12, 40, 50), (20, 42, 52), (24, 44, 54)):
        I(f's_cselect_b32 s{dst}, s{a}, s{b}')
        I(f's_cselect_b32 s{dst+1}, s{a+1}, s{b+1}')
    I(f's_lshl_b32 s4, {S_HP}, 1')
    I(f's_add_u32 s4, s4, {S_R}')
    I(f's_lshl_b32 s5, {S_B}, 3')
    I(f's_add_u32 s5, s5, {S_HP}')
    I(f's_lshl_b32 s6, {S_B}, 4')
    I('s_add_u32 s6, s6, s4')
    I(f's_cmp_eq_u32 {S_BR}, 0')
    I('s_cselect_b32 s5, s5, s6')
    I('s_lshl_b32 s5, s5, 19')
    I('s_add_u32 s8, s8, s5'); I('s_addc_u32 s9, s9, 0')
    I('s_add_u32 s12, s12, s5'); I('s_addc_u32 s13, s13, 0')
    I('s_mov_b32 s10, 524288'); I('s_mov_b32 s11, 0x20000')
    I('s_mov_b32 s14, 524288'); I('s_mov_b32 s15, 0x20000')
    I(f's_mul_i32 s5, {S_B}, 71680')
    I('s_add_u32 s16, s16, s5'); I('s_addc_u32 s17, s17, 0')
    I('s_mov_b32 s18, 71680'); I('s_mov_b32 s19, 0x20000')
    I('s_lshl_b32 s5, s4, 9')
    I('s_add_u32 s20, s20, s5'); I('s_addc_u32 s21, s21, 0')
    I('s_sub_u32 s22, 3670016, s5'); I('s_mov_b32 s23, 0x20000')
    I(f's_mul_i32 s5, {S_HP}, 458752')
    I('s_add_u32 s24, s24, s5'); I('s_addc_u32 s25, s25, 0')
    I('s_mov_b32 s26, 458752'); I('s_mov_b32 s27, 0x20000')
    I(f's_lshl_b32 s5, {S_BR}, 4')
    I(f's_add_u32 s5, s5, {S_B}')
    I('s_lshl_b32 s5, s5, 3')
    I(f's_add_u32 s5, s5, {S_HP}')
    I('s_mul_i32 s5, s5, 71680')
    I('s_add_u32 s28, s56, s5'); I('s_addc_u32 s29, s57, 0')
    I('s_mov_b32 s30, 71680'); I('s_mov_b32 s31, 0x20000')
    I(f's_and_b32 {S_ROT8}, {S_B}, 7')
    I(f's_cmp_ge_u32 {S_B}, 14')
    I(f's_cselect_b32 s5, 14, 0')
    I(f's_sub_u32 {S_ROT14}, {S_B}, s5')
    I(f's_lshl_b32 s5, {S_G}, 13')
    I(f's_lshl_b32 s6, {S_R}, 15')
    I(f's_add_u32 {S_MK}, s6, s5')
    I(f's_mul_i32 s7, {S_R}, 49152')
    I(f's_add_u32 {S_MV}, s7, s5')
    I(f's_add_u32 {S_MV}, {S_MV}, 65536')
    I(f's_add_u32 {S_WQB}, s7, {LWQ(0,0)}')
    I(f's_add_u32 {S_KO}, s5, {2*16384}')
    I(f's_add_u32 {S_VO}, s5, {1*16384}')
    I(f's_mul_i32 {S_WOM}, {S_W}, 7168')
    I(f's_mov_b32 {S_C}, {LOG2E_16:#x}')
    I(f's_mov_b32 {S_T}, {T_RAW:#x}')
    I(f'v_lshlrev_b32 v1, 9, {n}')
    I('v_add_u32 v1, s6, v1')
    I(f'v_and_b32 v5, 3, {n}')
    I(f'v_xor_b32 v5, v5, {q}')
    I('v_lshlrev_b32 v5, 4, v5')
    I('v_add_u32 v1, v1, v5')
    I(f'v_lshrrev_b32 v6, 2, {n}')
    for x in range(4):
        I(f'v_xor_b32 v5, {x}, v6')
        I('v_lshlrev_b32 v5, 6, v5')
        I(f'v_add_u32 {vr(V_KADDR+x)}, v1, v5')
    I(f'v_lshlrev_b32 v1, 2, {q}')
    I('v_add_u32 v1, v1, v6')
    I('v_and_b32 v7, 7, v1')
    I('v_lshlrev_b32 v1, 9, v1')
    I(f'v_and_b32 v8, 3, {n}')
    I('v_lshlrev_b32 v8, 3, v8')
    I('v_add_u32 v1, v1, v8')
    I('v_add_u32 v1, s7, v1')
    I('v_add_u32 v1, 65536, v1')
    for y in range(8):
        I(f'v_xor_b32 v5, {y}, v7')
        I('v_lshlrev_b32 v5, 5, v5')
        I(f'v_add_u32 {vr(V_VADDR+y)}, v1, v5')
    I(f'v_lshlrev_b32 v1, 3, {q}')
    I('v_add_u32 v1, v1, v6')
    I('v_lshlrev_b32 v1, 8, v1')
    I('v_add_u32 v1, v1, v8')
    I(f'v_add_u32 v1, {S_WQB}, v1')
    I(f'v_and_b32 v7, 1, {q}')
    I('v_lshlrev_b32 v7, 2, v7')
    I('v_add_u32 v7, v7, v6')
    for y in range(8):
        I(f'v_xor_b32 v5, {y}, v7')
        I('v_lshlrev_b32 v5, 5, v5')
        I(f'v_add_u32 {vr(V_QADDR+y)}, v1, v5')
    for i in range(4):
        f4 = 4 * ((i >> 1) & 1)
        I(f'v_add_u32 v5, {f4}, {q}')
        I('v_lshlrev_b32 v5, 1, v5')
        I(f'v_xor_b32 v5, v5, {n}')
        I('v_lshlrev_b32 v5, 4, v5')
        I(f'v_lshlrev_b32 v7, 13, {q}')
        I('v_add_u32 v5, v5, v7')
        I(f'v_add_u32 {vr(V_WQPAT+i)}, {4*i*8192 - 1024*i}, v5')


def kv_dma_group(E, which, lds_base_s, lds_lit, soff, i0, lds_abs, tag, npat):
    srd = sK if which == 'K' else sV
    pat = V_KPAT if which == 'K' else V_VPAT
    pol = (' ' + OPT['kvpol']) if OPT['kvpol'] else ''
    out = []
    for k in range(4):
        out.append(mk(f'buffer_load_dwordx4 {vr(pat + (i0 + k) % npat)}, {srd}, {soff} offen offset:{1024*k}{pol} lds',
                      ('dma', lds_abs + 1024 * k, lds_abs + 1024 * (k + 1), tag)))
    return out

def dma_tile_half(E, which, p, t):
    r, g = E.r, E.g
    mb = S_MK if which == 'K' else S_MV
    so, so2 = (S_KO, S_KO2) if which == 'K' else (S_VO, S_VO2)
    base = (LK(r, p) if which == 'K' else LV(r, p)) + g * 8192
    npat = 8 if which == 'K' else 4
    tag = f'{which}{r}_{t}'
    out = []
    out.append(mk(f's_add_u32 m0, {mb}, {p*16384}'))
    out.append(mk(f's_add_u32 {so2}, {so}, 4096'))
    out += kv_dma_group(E, which, mb, 0, so, 0, base, tag, npat)
    out.append(mk(f's_add_u32 m0, {mb}, {p*16384 + 4096}'))
    out.append(mk(f's_add_u32 {so}, {so}, 16384'))
    out += kv_dma_group(E, which, mb, 0, so2, 4, base + 4096, tag, npat)
    return out

def prefill_list(E):
    r = E.r
    out = []
    for which, p, t in (('K', 0, 0), ('V', 0, 0), ('K', 1, 1)):
        mb = S_MK if which == 'K' else S_MV
        npat = 8 if which == 'K' else 4
        base = LK(r, p) if which == 'K' else LV(r, p)
        for grp in range(4):
            out.append(mk(f's_add_u32 m0, {mb}, {p*16384 + 4096*grp}'))
            out.append(mk(f's_mov_b32 {S_T3}, {t*16384 + 4096*grp}'))
            out += kv_dma_group(E, which, mb, 0, S_T3, 4 * grp, base + 4096 * grp, f'{which}{r}_{t}', npat)
    return out

def wq_tile_dma(E, i):
    r = E.r
    slot, hh = i & 3, i & 1
    out = []
    out.append(mk(f's_lshl_b32 {S_WQA}, {S_DKS}, 18'))
    if hh:
        out.append(mk(f's_add_u32 {S_WQA}, {S_WQA}, 256'))
    out.append(mk(f's_add_u32 m0, {S_WQB}, {slot*8192}'))
    out.append(mk(f's_add_u32 {S_WQC}, {S_WQA}, 131072'))
    for half in range(2):
        if half:
            out.append(mk(f's_add_u32 m0, {S_WQB}, {slot*8192 + 4096}'))
            if hh:
                out.append(mk(f's_add_u32 {S_DKS}, {S_DKS}, 1'))
            else:
                out.append(mk('s_nop 0'))
        so = S_WQC if half else S_WQA
        for k in range(4):
            lo = LWQ(r, slot) + 4096 * half + 1024 * k
            out.append(mk(f'buffer_load_dwordx4 {vr(V_WQPAT+k)}, {sWQ}, {so} offen offset:{1024*k} lds', ('dma', lo, lo + 1024, f'WQ{r}_{i}')))
    if hh:
        out.append(mk(f's_cmp_eq_u32 {S_DKS}, 14'))
        out.append(mk(f's_cselect_b32 {S_DKS}, 0, {S_DKS}'))
    return out


def qproj(E):
    g, r, I = E.g, E.r, E.I
    NT = 3 - g
    n, q = vr(V_N), vr(V_Q)
    I(f'v_mul_u32_u24 v1, 896, {n}')
    I(f'v_lshlrev_b32 v2, 4, {q}')
    I('v_add_u32 v1, v1, v2')
    for j in range(NT):
        I(f'v_add_u32 v{2+j}, {(3*g+j)*14336}, v1')
    I(f's_mov_b32 {S_T0}, {S_ROT14}')
    for u in range(14):
        I(f's_lshl_b32 {S_T1}, {S_T0}, 6')
        I(f's_add_u32 {S_T0}, {S_T0}, 1')
        for j in range(NT):
            I(f'buffer_load_dwordx4 {ar((j*14+u)*4,4)}, v{2+j}, {sX}, {S_T1} offen')
        I(f's_cmp_eq_u32 {S_T0}, 14')
        I(f's_cselect_b32 {S_T0}, 0, {S_T0}')
    pre = []
    if g == 1:
        I(f's_mov_b32 {S_DKS}, {S_ROT14}')
        for i in range(3):
            E.add(wq_tile_dma(E, i))
    else:
        pre = prefill_list(E)
    def reads(i, lo):
        out = []
        for y in range(lo, lo + 4):
            f = A_QF + 4 * y
            base = LWQ(r, i & 3)
            for h in range(2):
                out.append(mk(f'ds_read_b64_tr_b16 {ar(f+2*h,2)}, {vr(V_QADDR+y)} offset:{(i&3)*8192 + 1024*h}',
                              ('r', base, base + 8192, f'WQ{r}_{i}')))
        return out
    def mms(i, lo):
        u, hh = i >> 1, i & 1
        out = []
        for y in range(lo, lo + 4):
            for j in range(NT):
                d = vr((j * 16 + 8 * hh + y) * 4, 4)
                out.append(mfma(d, ar(A_QF + 4 * y, 4), ar((j * 14 + u) * 4, 4), '0' if u == 0 else d))
        return out
    npre = 0
    for i in range(28):
        if g == 1:
            I(f's_waitcnt vmcnt({8*min(2, 27-i)})')
        elif i == 0:
            I('s_waitcnt vmcnt(0)')
        I('s_barrier')
        E.add(reads(i, 0))
        side = []
        if g == 1 and i + 3 <= 27:
            side = wq_tile_dma(E, i + 3)
        if g == 0 and npre < len(pre):
            side = pre[npre:npre + 6] if i % 2 == 0 else []
            if i % 2 == 0:
                npre += 6
        if i > 0:
            E.add(merge(mms(i - 1, 4), side, per=1 if g == 0 else 2))
        else:
            E.add(side)
        I('s_waitcnt lgkmcnt(0)')
        E.add(merge(mms(i, 0), reads(i, 4), per=1))
        I('s_waitcnt lgkmcnt(0)')
    assert npre >= len(pre)
    E.add(mms(27, 4))
    I('s_nop 7')
    for f in range(8 * NT):
        for k in range(4):
            I(f'v_cvt_pk_bf16_f32 {vr(4*f+k)}, {vr(8*f+2*k)}, {vr(8*f+2*k+1)}')
        if f > 0:
            swaps(E, f - 1)
    I('s_nop 1')
    swaps(E, 8 * NT - 1)

def swaps(E, f):
    b = 4 * f
    E.I(f'v_permlane32_swap_b32 {vr(b)}, {vr(b+2)}')
    E.I(f'v_permlane32_swap_b32 {vr(b+1)}, {vr(b+3)}')
    E.I('s_nop 0')
    E.I(f'v_permlane16_swap_b32 {vr(b)}, {vr(b+2)}')
    E.I(f'v_permlane16_swap_b32 {vr(b+1)}, {vr(b+3)}')


def xlane(out, x, y, op):
    for sw in ('v_permlane32_swap_b32', 'v_permlane16_swap_b32'):
        out.append(mk(f'v_mov_b32 {vr(y)}, {vr(x)}'))
        out.append(mk('s_nop 1'))
        out.append(mk(f'{sw} {vr(x)}, {vr(y)}'))
        out.append(mk(f'{op} {vr(x)}, {vr(x)}, {vr(y)}'))

def softmax(E, j, first, site):
    s = V_S + 8 * j
    mx = V_MX + j
    out = []
    out.append(mk(f'v_max3_f32 {vr(mx)}, {vr(s)}, {vr(s+1)}, {vr(s+2)}'))
    out.append(mk(f'v_max3_f32 {vr(mx)}, {vr(mx)}, {vr(s+3)}, {vr(s+4)}'))
    out.append(mk(f'v_max3_f32 {vr(mx)}, {vr(mx)}, {vr(s+5)}, {vr(s+6)}'))
    out.append(mk(f'v_max_f32 {vr(mx)}, {vr(mx)}, {vr(s+7)}'))
    if first:
        xlane(out, mx, V_TMP, 'v_max_f32')
        out.append(mk(f'v_mov_b32 {vr(V_M+j)}, {vr(mx)}'))
        out.append(mk(f'v_add_f32 {vr(V_THR+j)}, {S_T}, {vr(mx)}'))
        out.append(mk(f'v_mul_f32 {vr(V_NMC+j)}, {S_C}, {vr(mx)}'))
        out.append(mk(f'v_sub_f32 {vr(V_NMC+j)}, 0, {vr(V_NMC+j)}'))
        out.append(mk(f'v_mov_b32 {vr(V_L0+j)}, 0'))
        out.append(mk(f'v_mov_b32 {vr(V_L1+j)}, 0'))
    else:
        lab = f'{site}_{j}'
        out.append(mk(f'v_cmp_gt_f32 vcc, {vr(mx)}, {vr(V_THR+j)}'))
        out.append(mk(f's_cbranch_vccnz L_rare_{lab}\nL_back_{lab}:'))
        if not E.trace:
            E.rare.append(rare_block(j, lab))
    for k in range(8):
        out.append(mk(f'v_fma_f32 {vr(s+k)}, {vr(s+k)}, {S_C}, {vr(V_NMC+j)}'))
    for k in range(8):
        out.append(mk(f'v_exp_f32 {vr(s+k)}, {vr(s+k)}'))
    for k in range(4):
        out.append(mk(f'v_cvt_pk_bf16_f32 {vr(V_P+4*j+k)}, {vr(s+2*k)}, {vr(s+2*k+1)}'))
        out.append(mk(f'v_add_f32 {vr(V_L0+j)}, {vr(V_L0+j)}, {vr(s+2*k)}'))
        out.append(mk(f'v_add_f32 {vr(V_L1+j)}, {vr(V_L1+j)}, {vr(s+2*k+1)}'))
    return out

def rare_block(j, lab):
    mx = V_MX + j
    out = [Ins(f'L_rare_{lab}:')]
    out.append(mk('s_nop 7'))
    xlane(out, mx, V_TMP, 'v_max_f32')
    out.append(mk(f'v_max_f32 {vr(mx)}, {vr(mx)}, {vr(V_M+j)}'))
    out.append(mk(f'v_sub_f32 {vr(V_TMP)}, {vr(V_M+j)}, {vr(mx)}'))
    out.append(mk(f'v_mul_f32 {vr(V_TMP)}, {S_C}, {vr(V_TMP)}'))
    out.append(mk(f'v_exp_f32 {vr(V_TMP)}, {vr(V_TMP)}'))
    out.append(mk(f'v_mov_b32 {vr(V_M+j)}, {vr(mx)}'))
    out.append(mk(f'v_add_f32 {vr(V_THR+j)}, {S_T}, {vr(mx)}'))
    out.append(mk(f'v_mul_f32 {vr(V_NMC+j)}, {S_C}, {vr(mx)}'))
    out.append(mk(f'v_sub_f32 {vr(V_NMC+j)}, 0, {vr(V_NMC+j)}'))
    out.append(mk(f'v_mul_f32 {vr(V_L0+j)}, {vr(V_L0+j)}, {vr(V_TMP)}'))
    out.append(mk(f'v_mul_f32 {vr(V_L1+j)}, {vr(V_L1+j)}, {vr(V_TMP)}'))
    for k in range(64):
        a = ar(j * 64 + k)
        t = vr(V_TMP + 1 + (k & 3))
        out.append(mk(f'v_accvgpr_read_b32 {t}, {a}'))
        out.append(mk(f'v_mul_f32 {t}, {t}, {vr(V_TMP)}'))
        out.append(mk(f'v_accvgpr_write_b32 {a}, {t}'))
    out.append(mk('s_nop 1'))
    out.append(mk(f's_branch L_back_{lab}'))
    return out

def wo_tile_dma(E, i):
    w = 2 * E.r + E.g
    slot = i & 3
    out = []
    out.append(mk(f's_add_u32 {S_T0}, {S_ROT8}, {i & 7}'))
    out.append(mk(f's_and_b32 {S_T0}, {S_T0}, 7'))
    if i >= 8:
        out.append(mk(f's_add_u32 {S_T0}, {S_T0}, 8'))
    out.append(mk(f's_mul_i32 {S_T0}, {S_T0}, 28672'))
    out.append(mk(f's_add_u32 {S_WOO}, {S_T0}, {S_WOM}'))
    for k in range(7):
        lo = LW[slot] + w * 7168 + 1024 * k
        out.append(mk(f's_add_u32 m0, {S_WOM}, {LW[slot] + 1024*k}'))
        out.append(mk('s_nop 0'))
        out.append(mk(f'buffer_load_dwordx4 {vr(WOPAT[k])}, {sWO}, {S_WOO} offen lds', ('dma', lo, lo + 1024, f'WO_{i}')))
    return out

def substep(E, t, p, first=False, issueV=True, issueK=True, vm1=16, vm2=16, site='x', wo_pre=False):
    g, r, I = E.g, E.r, E.I
    NT = 3 - g
    if vm1 is not None:
        I(f's_waitcnt vmcnt({vm1})')
    I('s_barrier')
    kb = LK(r, p)
    for ks in range(8):
        for kt in range(2):
            f = A_KF + 4 * (2 * ks + kt)
            I(f'ds_read_b128 {ar(f,4)}, {vr(V_KADDR + (ks & 3))} offset:{p*16384 + kt*8192 + (ks >> 2)*256}',
              ('r', kb + kt * 8192, kb + kt * 8192 + 8192, f'K{r}_{t}'))
    vdma = dma_tile_half(E, 'V', 1 - p, t + 1) if issueV else []
    def qk(j):
        out = []
        for ks in range(8):
            for kt in range(2):
                d = vr(V_S + 8 * j + 4 * kt, 4)
                out.append(mfma(d, ar(A_KF + 4 * (2 * ks + kt), 4), vr(j * 32 + 4 * ks, 4), '0' if ks == 0 else d))
        return out
    E.add(vdma[:6])
    m0 = qk(0)
    rest = vdma[6:]
    for f, m in enumerate(m0):
        I(f's_waitcnt lgkmcnt({15 - f})')
        E.add([m])
        if rest and f % 2 == 1:
            E.add(rest[:1]); rest = rest[1:]
    E.add(rest)
    for j in range(1, NT):
        sm = softmax(E, j - 1, first, site)
        main = qk(j)
        E.add(main[:5])
        E.add([mk('s_nop 2')])
        E.add(merge(main[5:], sm, per=3))
    if vm2 is not None:
        I(f's_waitcnt vmcnt({vm2})')
    I('s_barrier')
    vb = LV(r, p)
    vreads = []
    for dt in range(16):
        f = V_VF + 4 * dt
        for h in range(2):
            vreads.append(mk(f'ds_read_b64_tr_b16 {vr(f+2*h,2)}, {vr(V_VADDR + (dt & 7))} offset:{p*16384 + (dt >> 3)*256 + 8192*h}',
                             ('r', vb + 8192 * h, vb + 8192 * h + 8192, f'V{r}_{t}')))
    kdma = dma_tile_half(E, 'K', p, t + 2) if issueK else []
    if wo_pre:
        kdma = wo_tile_dma(E, 0) + wo_tile_dma(E, 1)
    E.add(vreads[:12])
    if NT == 3:
        pass
    I('s_nop 1')
    E.add(softmax(E, NT - 1, first, site))
    I('s_waitcnt lgkmcnt(0)')
    pv = []
    for dt in range(16):
        for j in range(NT):
            d = ar((j * 16 + dt) * 4, 4)
            pv.append((dt, mfma(d, vr(V_VF + 4 * dt, 4), vr(V_P + 4 * j, 4), '0' if first else d)))
    seq = []
    rd = vreads[12:]
    kd = list(kdma)
    issued = 0
    for idx, (dt, m) in enumerate(pv):
        if idx % NT == 0 and dt >= 6:
            need = 2 * (dt - 6) + 2
            while issued < need:
                seq.append(rd[issued]); issued += 1
            seq.append(mk(f's_waitcnt lgkmcnt({min(15, issued - need)})'))
        seq.append(m)
        if issued < len(rd):
            seq.append(rd[issued]); issued += 1
        if kd:
            seq.append(kd.pop(0))
            if issued >= len(rd) and kd:
                pass
    seq.extend(kd)
    E.add(seq)


def attention(E):
    g, I = E.g, E.I
    substep(E, 0, 0, first=True, vm1=(32 if g == 0 else None), vm2=(24 if g == 0 else None), site=f'g{g}a')
    if E.trace:
        for t in range(1, 30):
            substep(E, t, t & 1, site='t')
    else:
        I(f's_mov_b32 {S_CNT}, 15')
        E.L(f'L_loop_g{g}')
        substep(E, 1, 1, site=f'g{g}b')
        I(f's_sub_u32 {S_CNT}, {S_CNT}, 1')
        I(f's_cmp_eq_u32 {S_CNT}, 0')
        I(f's_cbranch_scc1 L_loopend_g{g}')
        substep(E, 2, 0, site=f'g{g}c')
        I(f's_branch L_loop_g{g}')
        E.L(f'L_loopend_g{g}')
    substep(E, 30, 0, issueK=False, site=f'g{g}d')
    out_patterns(E)
    substep(E, 31, 1, issueV=False, issueK=False, vm1=8, vm2=0, site=f'g{g}e', wo_pre=True)


def out_patterns(E):
    I = E.I
    t0, t1, t2 = vr(V_TMP), vr(V_TMP + 1), vr(V_TMP + 2)
    for k in range(7):
        I(f'v_lshrrev_b32 {t0}, 7, {vr(V_L16)}')
        I(f'v_add_u32 {t0}, {8*k}, {t0}')
        I(f'v_mul_u32_u24 {t0}, 37, {t0}')
        I(f'v_lshrrev_b32 {t0}, 8, {t0}')
        I(f'v_mul_u32_u24 {t1}, 896, {t0}')
        I(f'v_add_u32 {t2}, {1024*k}, {vr(V_L16)}')
        I(f'v_sub_u32 {t2}, {t2}, {t1}')
        I(f'v_lshrrev_b32 {t0}, 1, {t0}')
        I(f'v_and_b32 {t0}, 3, {t0}')
        I(f'v_lshlrev_b32 {t0}, 5, {t0}')
        I(f'v_xor_b32 {t2}, {t2}, {t0}')
        I(f'v_add_u32 {vr(WOPAT[k])}, {t1}, {t2}')


def finish_o(E):
    g, r, I = E.g, E.r, E.I
    NT = 3 - g
    I('s_barrier')
    out = []
    for j in range(NT):
        out.append(mk(f'v_add_f32 {vr(V_L0+j)}, {vr(V_L0+j)}, {vr(V_L1+j)}'))
        xlane(out, V_L0 + j, V_TMP, 'v_add_f32')
        out.append(mk(f'v_rcp_f32 {vr(V_L0+j)}, {vr(V_L0+j)}'))
    E.add(out)
    I(f's_cmp_eq_u32 {S_R}, 0')
    I(f's_cselect_b32 {S_T0}, {LO[0]}, {LO[1]}')
    I(f's_mul_i32 {S_T1}, {S_G}, {3*8192}')
    I(f's_add_u32 {S_T0}, {S_T0}, {S_T1}')
    ad = vr(V_OT)
    I(f'v_add_u32 {ad}, {S_T0}, {vr(V_L16)}')
    T = V_VF
    for j in range(NT):
        for s_ in range(8):
            t = T + 12 * ((j * 8 + s_) & 1)
            for k in range(8):
                I(f'v_accvgpr_read_b32 {vr(t+k)}, {ar((j*16+2*s_)*4+k)}')
            for k in range(8):
                I(f'v_mul_f32 {vr(t+k)}, {vr(t+k)}, {vr(V_L0+j)}')
            for k in range(4):
                I(f'v_cvt_pk_bf16_f32 {vr(t+8+k)}, {vr(t+2*k)}, {vr(t+2*k+1)}')
            lo = LO[r] + ((3 * g + j) * 8 + s_) * 1024
            I(f'ds_write_b128 {ad}, {vr(t+8,4)} offset:{j*8192 + s_*1024}', ('w', lo, lo + 1024, f'O{r}'))
    I('s_waitcnt lgkmcnt(0)')


def o_frag_reads(E, head, i8):
    out = []
    t = vr(V_OT + 1 + (i8 & 1))
    out.append(mk(f's_add_u32 {S_T1}, {S_ROT8}, {i8}'))
    out.append(mk(f's_and_b32 {S_T1}, {S_T1}, 7'))
    out.append(mk(f's_lshl_b32 {S_T1}, {S_T1}, 10'))
    out.append(mk(f's_add_u32 {S_T1}, {S_T1}, {LO[head]}'))
    out.append(mk(f'v_add_u32 {t}, {S_T1}, {vr(V_L16)}'))
    for jt in range(5):
        lo = LO[head] + jt * 8192
        out.append(mk(f'ds_read_b128 {ar((i8*5+jt)*4,4)}, {t} offset:{jt*8192}', ('r', lo, lo + 8192, f'O{head}')))
    return out


def outproj(E):
    I = E.I
    w = 2 * E.r + E.g
    n, q = vr(V_N), vr(V_Q)
    I('s_barrier')
    for i8 in range(8):
        E.add(o_frag_reads(E, 0, i8))
    t0, t1, t2 = vr(V_OT + 3), vr(V_OT + 4), vr(V_OT + 5)
    I(f'v_lshrrev_b32 {t0}, 2, {n}')
    I(f'v_lshlrev_b32 {t1}, 2, {q}')
    I(f'v_add_u32 {t0}, {t0}, {t1}')
    I(f'v_lshrrev_b32 {t1}, 1, {t0}')
    I(f'v_and_b32 {t1}, 3, {t1}')
    I(f'v_mul_u32_u24 {t0}, 896, {t0}')
    I(f'v_and_b32 {t2}, 3, {n}')
    I(f'v_lshlrev_b32 {t2}, 3, {t2}')
    I(f'v_add_u32 {t0}, {t0}, {t2}')
    I(f's_mul_i32 {S_T2}, {S_W}, 7')
    for u in range(7):
        I(f'v_xor_b32 {t2}, {S_T2}, {t1}')
        I(f'v_lshlrev_b32 {t2}, 5, {t2}')
        I(f'v_add_u32 {vr(V_WOA+u)}, {t0}, {t2}')
        I(f'v_add_u32 {vr(V_WOB+u)}, {LW[2]}, {vr(V_WOA+u)}')
        I(f's_add_u32 {S_T2}, {S_T2}, 1')
    I('s_waitcnt lgkmcnt(0)')
    I('s_barrier')
    E.add(wo_tile_dma(E, 2))
    E.add(wo_tile_dma(E, 3))
    def reads(i, us):
        slot = i & 3
        base = V_WOA if slot < 2 else V_WOB
        out = []
        for u in us:
            for h in range(2):
                lo = LW[slot] + 14336 * h
                out.append(mk(f'ds_read_b64_tr_b16 {ar(A_OG+4*u+2*h,2)}, {vr(base+u)} offset:{(slot&1)*28672 + 14336*h}',
                              ('r', lo, lo + 14336, f'WO_{i}')))
        return out
    def mms(i, us):
        out = []
        for u in us:
            for jt in range(5):
                d = vr((u * 5 + jt) * 4, 4)
                out.append(mfma(d, ar(A_OG + 4 * u, 4), ar(((i & 7) * 5 + jt) * 4, 4), '0' if i == 0 else d))
        return out
    for i in range(16):
        younger = min(3 if i == 0 else 2, 15 - i)
        I(f's_waitcnt vmcnt({7*younger})')
        I('s_barrier')
        E.add(reads(i, range(4)))
        side = wo_tile_dma(E, i + 3) if (1 <= i and i + 3 <= 15) else []
        if i > 0:
            E.add(merge(mms(i - 1, range(4, 7)), side, per=2))
        I('s_waitcnt lgkmcnt(0)')
        side = reads(i, range(4, 7))
        if 1 <= i <= 8:
            side = side + o_frag_reads(E, 1, i - 1)
        E.add(merge(mms(i, range(4)), side, per=1))
        I('s_waitcnt lgkmcnt(0)')
    E.add(mms(15, range(4, 7)))
    st, st2 = vr(V_OT + 3), vr(V_OT + 4)
    I(f's_mul_i32 {S_T0}, {S_W}, 17920')
    I(f'v_add_u32 {st}, {S_T0}, {vr(V_L16)}')
    I(f'v_lshrrev_b32 {st2}, 1, {vr(V_L16)}')
    I(f's_add_u32 {S_T0}, {S_T0}, 17408')
    I(f'v_add_u32 {st2}, {S_T0}, {st2}')
    I('s_nop 2')
    for pi in range(17):
        b = 8 * pi
        for k in range(4):
            I(f'v_cvt_pk_bf16_f32 {vr(b+k)}, {vr(b+2*k)}, {vr(b+2*k+1)}')
        if pi % 4 == 0:
            I(f's_mov_b32 {S_T1}, {pi*1024}')
        I(f'buffer_store_dwordx4 {vr(b,4)}, {st}, {sWS}, {S_T1} offen offset:{(pi%4)*1024}')
    I('v_cvt_pk_bf16_f32 v136, v136, v137')
    I('v_cvt_pk_bf16_f32 v137, v138, v139')
    I(f'buffer_store_dwordx2 v[136:137], {st2}, {sWS}, 0 offen')


def reduce_kernel():
    o = []
    I = lambda t: o.append('  ' + t)
    o.append('.globl reduce_out_kernel\n.p2align 8\n.type reduce_out_kernel,@function\nreduce_out_kernel:')
    I('s_cmp_ge_u32 s2, 576')
    I('s_cbranch_scc1 L_rend')
    I('s_load_dwordx2 s[4:5], s[0:1], 80')
    I('s_load_dwordx2 s[6:7], s[0:1], 96')
    I('v_lshrrev_b32 v1, 6, v0')
    I('v_and_b32 v0, 63, v0')
    I('v_readfirstlane_b32 s20, v1')
    I('s_mul_hi_u32 s21, s2, 238609295')
    I('s_mul_i32 s22, s21, 18')
    I('s_sub_u32 s22, s2, s22')
    I('s_mul_i32 s23, s21, 573440')
    I('s_waitcnt lgkmcnt(0)')
    I('s_add_u32 s8, s6, s23'); I('s_addc_u32 s9, s7, 0')
    I('s_mov_b32 s10, 573440'); I('s_mov_b32 s11, 0x20000')
    I('s_mov_b32 s12, s4'); I('s_mov_b32 s13, s5')
    I('s_mov_b32 s14, 2293760'); I('s_mov_b32 s15, 0x20000')
    I('s_mul_i32 s24, s20, 17920')
    I('s_lshl_b32 s25, s22, 10')
    I('s_add_u32 s24, s24, s25')
    I('v_and_b32 v2, 15, v0')
    I('v_mul_u32_u24 v2, 1792, v2')
    I('v_lshrrev_b32 v3, 4, v0')
    I('v_lshlrev_b32 v3, 3, v3')
    I('v_add_u32 v2, v2, v3')
    I('s_and_b32 s26, s21, 15')
    I('s_mul_i32 s26, s26, 143360')
    I('s_lshr_b32 s27, s21, 4')
    I('s_mul_i32 s27, s27, 896')
    I('s_add_u32 s26, s26, s27')
    I('s_mul_i32 s27, s20, 224')
    I('s_add_u32 s26, s26, s27')
    for k, dst in ((0, 's30'), (1, 's31')):
        I('s_lshl_b32 s28, s22, 1')
        if k: I('s_add_u32 s28, s28, 1')
        I('s_mul_i32 s29, s28, 52')
        I('s_lshr_b32 s29, s29, 8')
        I('s_mul_i32 s32, s29, 5')
        I('s_sub_u32 s32, s28, s32')
        I('s_mul_i32 s32, s32, 28672')
        I('s_lshl_b32 s29, s29, 5')
        I('s_add_u32 s32, s32, s29')
        I(f's_add_u32 {dst}, s32, s26')
    I('s_cmp_eq_u32 s22, 17')
    I('s_cbranch_scc1 L_rsingle')
    def body(nw):
        I(f'v_lshlrev_b32 v1, {2 + nw//2}, v0')
        I('v_add_u32 v1, s24, v1')
        for p in range(8):
            I(f's_mov_b32 s33, {p*71680}')
            I(f'buffer_load_dwordx{nw} v[{8+4*p}:{8+4*p+nw-1}], v1, s[8:11], s33 offen')
        for p in range(8):
            I(f's_waitcnt vmcnt({7-p})')
            for k in range(nw):
                src = 8 + 4 * p + k
                if p == 0:
                    I(f'v_lshlrev_b32 v{48+2*k}, 16, v{src}')
                    I(f'v_and_b32 v{49+2*k}, 0xffff0000, v{src}')
                else:
                    I(f'v_lshlrev_b32 v4, 16, v{src}')
                    I(f'v_and_b32 v5, 0xffff0000, v{src}')
                    I(f'v_add_f32 v{48+2*k}, v{48+2*k}, v4')
                    I(f'v_add_f32 v{49+2*k}, v{49+2*k}, v5')
        for k in range(nw):
            I(f'v_cvt_pk_bf16_f32 v{8+k}, v{48+2*k}, v{49+2*k}')
        I('buffer_store_dwordx2 v[8:9], v2, s[12:15], s30 offen')
        if nw == 4:
            I('buffer_store_dwordx2 v[10:11], v2, s[12:15], s31 offen')
        I('s_endpgm')
    body(4)
    o.append('L_rsingle:')
    body(2)
    o.append('L_rend:')
    I('s_endpgm')
    return '\n'.join(o) + '\n'


def descriptor(name, vgpr, accum, sgpr=102):
    return f"""
.amdhsa_kernel {name}
  .amdhsa_next_free_vgpr {vgpr}
  .amdhsa_next_free_sgpr {sgpr}
  .amdhsa_accum_offset {accum}
  .amdhsa_group_segment_fixed_size 0
  .amdhsa_kernarg_size 104
  .amdhsa_user_sgpr_count 2
  .amdhsa_user_sgpr_kernarg_segment_ptr 1
  .amdhsa_system_sgpr_workgroup_id_x 1
.end_amdhsa_kernel
"""

HEADER = """; Fused attention block: Q projection, flash attention, output projection partials, then a head reduction.
; @launch kernel={name}_kernel grid=(256,1,1) block=(256,1,1) lds={lds}
; @launch kernel=reduce_out_kernel grid=(576,1,1) block=(256,1,1) lds=0
.amdgcn_target "amdgcn-amd-amdhsa--gfx950"
.text
.globl {name}_kernel
.p2align 8
.type {name}_kernel,@function
{name}_kernel:
"""

def variant(E):
    qproj(E)
    attention(E)
    finish_o(E)

def build_code():
    lines = [HEADER.format(name=NAME, lds=LDS_BYTES)]
    E = Em(0, 0, False)
    prologue(E)
    E.I(f's_cmp_eq_u32 {S_G}, 0')
    E.I('s_cbranch_scc0 L_g1')
    variant(E)
    E.I('s_branch L_common')
    rare = E.rare
    txt = [i.text for i in E.out]
    E1 = Em(0, 1, False)
    E1.L('L_g1')
    variant(E1)
    E1.L('L_common')
    outproj(E1)
    E1.L('L_end')
    E1.I('s_endpgm')
    txt += [i.text for i in E1.out]
    for blk in rare + E1.rare:
        txt += [i.text for i in blk]
    lines.append('\n'.join(txt) + '\n')
    lines.append(reduce_kernel())
    lines.append('.section .rodata,"a"\n.p2align 6')
    lines.append(descriptor(NAME + '_kernel', 512, 256))
    lines.append('.p2align 6')
    lines.append(descriptor('reduce_out_kernel', 64, 64, 48))
    return ''.join(l if l.endswith('\n') else l + '\n' for l in lines)

def run_checks():
    allerr = []; accs = []; epochs = []
    for r in range(2):
        for g in range(2):
            E = Em(r, g, True)
            prologue(E); variant(E); outproj(E)
            errs, acc, ep = check_wave(E.out, f'r{r}g{g}')
            allerr += errs; accs.append(acc); epochs.append(ep)
    if len(set(epochs)) != 1:
        allerr.append(f'barrier counts differ: {epochs}')
    allerr += check_lds(accs, limit=LDS_BYTES)
    return allerr, epochs

if __name__ == '__main__':
    out = sys.argv[1] if len(sys.argv) > 1 else 'cdna_kernels/' + NAME + '.s'
    for a in sys.argv[2:]:
        k, v = a.split('=')
        OPT[k] = v
    if OPT.get('check', '1') == '1':
        errs, ep = run_checks()
        print('barriers per wave:', ep, 'errors:', len(errs))
        for e in errs[:30]:
            print(e)
    open(out, 'w').write(build_code())
    print('wrote', out)
```

```python
import gen, asmlib, re
from asmlib import check_wave, check_lds
def run(mut):
    allerr=[]; accs=[]
    for r in range(2):
        for g in range(2):
            E=gen.Em(r,g,True); gen.prologue(E); gen.variant(E); gen.outproj(E)
            tr=mut(E.out,r,g)
            errs,acc,ep=check_wave(tr,f'r{r}g{g}'); allerr+=errs; accs.append(acc)
    allerr+=check_lds(accs)
    return allerr
def nth(tr,pred,n):
    k=0
    for i,x in enumerate(tr):
        if pred(x):
            if k==n: return i
            k+=1
def m_vm(tr,r,g):
    i=nth(tr,lambda x:'vmcnt(16)' in x.text,40); tr[i]=asmlib.Ins('  s_waitcnt vmcnt(24)'); return tr
def m_bar(tr,r,g):
    i=nth(tr,lambda x:'s_barrier' in x.text,50); del tr[i]; return tr
def m_lg(tr,r,g):
    i=nth(tr,lambda x:'lgkmcnt(0)' in x.text,70); del tr[i]; return tr
def m_nop(tr,r,g):
    i=nth(tr,lambda x:'s_nop 2' in x.text,3); del tr[i]; return tr
for m in (m_vm,m_bar,m_lg,m_nop):
    e=run(m); print(m.__name__,len(e)); print('   ',e[0][:300] if e else '')
```

```python
import sys
HDR='''.amdgcn_target "amdgcn-amd-amdhsa--gfx950"
.text
.globl k
.p2align 8
.type k,@function
k:
'''
def footer(vg=32, sg=64, wg=256):
    return f'''
.section .rodata,"a"
.p2align 6
.amdhsa_kernel k
  .amdhsa_next_free_vgpr {vg}
  .amdhsa_next_free_sgpr {sg}
  .amdhsa_accum_offset {min(256,(vg+3)//4*4)}
  .amdhsa_group_segment_fixed_size 0
  .amdhsa_kernarg_size 16
  .amdhsa_user_sgpr_count 2
  .amdhsa_user_sgpr_kernarg_segment_ptr 1
  .amdhsa_system_sgpr_workgroup_id_x 1
.end_amdhsa_kernel
.amdgpu_metadata
---
amdhsa.version: [1, 2]
amdhsa.kernels:
  - .name: k
    .symbol: k.kd
    .kernarg_segment_size: 16
    .kernarg_segment_align: 8
    .group_segment_fixed_size: 0
    .private_segment_fixed_size: 0
    .wavefront_size: 64
    .sgpr_count: {sg}
    .vgpr_count: {vg}
    .max_flat_workgroup_size: {wg}
    .args:
      - {{.name: src, .size: 8, .offset: 0, .value_kind: global_buffer, .address_space: global}}
      - {{.name: st, .size: 8, .offset: 8, .value_kind: global_buffer, .address_space: global}}
...
.end_amdgpu_metadata
'''
PRO='''
  s_load_dwordx4 s[4:7], s[0:1], 0
  s_memrealtime s[30:31]
  s_waitcnt lgkmcnt(0)
  s_mov_b32 s8, s4
  s_mov_b32 s9, s5
  s_mov_b32 s10, 0x28000000
  s_mov_b32 s11, 0x20000
  s_mov_b32 s12, s6
  s_mov_b32 s13, s7
  s_mov_b32 s14, 0x100000
  s_mov_b32 s15, 0x20000
  v_lshrrev_b32 v2, 6, v0
  v_and_b32 v3, 63, v0
  s_nop 1
  v_readfirstlane_b32 s20, v2
'''
EPI='''
  s_waitcnt vmcnt(0)
  s_barrier
  s_memrealtime s[32:33]
  s_waitcnt lgkmcnt(0)
  v_mov_b32 v4, s30
  v_mov_b32 v5, s31
  v_mov_b32 v6, s32
  v_mov_b32 v7, s33
  s_lshl_b32 s34, s2, 5
  v_mov_b32 v8, s34
  v_cmp_eq_u32 vcc, 0, v0
  s_and_saveexec_b64 s[36:37], vcc
  s_cbranch_execz L_end
  buffer_store_dwordx4 v[4:7], v8, s[12:15], 0 offen
L_end:
  s_endpgm
'''
def stream(nw=4, bytesA=1536*1024, bytesB=None, depth=16, ring_kb=128, pol='', mode='uniform', same=0):
    s=HDR+PRO
    step=nw*1024
    if mode=='uniform':
        s+=f'  s_mul_i32 s21, s2, {bytesA}\n  s_mov_b32 s23, {bytesA//step}\n'
    elif mode=='het':
        s+=f'''  s_lshr_b32 s24, s2, 4
  s_lshl_b32 s24, s24, 3
  s_and_b32 s25, s2, 7
  s_add_u32 s24, s24, s25
  s_mul_i32 s21, s24, {bytesA}
  s_mov_b32 s23, {bytesA//step}
  s_bitcmp1_b32 s2, 3
  s_cbranch_scc0 L_t
  s_mul_i32 s21, s24, {bytesB}
  s_add_u32 s21, s21, {128*bytesA}
  s_mov_b32 s23, {bytesB//step}
L_t:
'''
    elif mode=='shared':
        s+=f'  s_and_b32 s24, s2, 7\n  s_mul_i32 s21, s24, {bytesA}\n  s_mov_b32 s23, {bytesA//step}\n'
    elif mode=='pair':
        s+=f'''  s_lshr_b32 s24, s2, 4
  s_lshl_b32 s24, s24, 3
  s_and_b32 s25, s2, 7
  s_add_u32 s24, s24, s25
  s_mul_i32 s21, s24, {bytesA}
  s_mov_b32 s23, {bytesA//step}
'''
    s+=f'''  s_lshl_b32 s25, s20, 10
  v_lshlrev_b32 v1, 4, v3
  v_add_u32 v1, s25, v1
  s_mov_b32 s22, s25
  s_add_u32 s26, s25, {ring_kb*1024}
L_loop:
  s_mov_b32 m0, s22
  s_add_u32 s22, s22, {step}
  buffer_load_dwordx4 v1, s[8:11], s21 offen {pol} lds
  s_add_u32 s21, s21, {step}
  s_cmp_ge_u32 s22, s26
  s_cselect_b32 s22, s25, s22
  s_waitcnt vmcnt({depth-1})
  s_sub_u32 s23, s23, 1
  s_cmp_lg_u32 s23, 0
  s_cbranch_scc1 L_loop
'''
    s+=EPI+footer(wg=nw*64)
    return s
if __name__=='__main__':
    import subprocess
    def build(name,src):
        open(name+'.s','w').write(src)
        subprocess.check_call(['clang','-x','assembler','-target','amdgcn-amd-amdhsa','-mcpu=gfx950',name+'.s','-o',name+'.co'])
    specs=[]
    for d in (4,8,16,24,32):
        build(f'u{d}',stream(depth=d)); specs.append(f'u{d}.co:k:256:256:131072')
    for d in (16,32):
        build(f'unt{d}',stream(depth=d,pol='nt')); specs.append(f'unt{d}.co:k:256:256:131072')
        build(f'het{d}',stream(depth=d,mode='het',bytesA=1<<20,bytesB=2<<20)); specs.append(f'het{d}.co:k:256:256:131072')
        build(f'hetnt{d}',stream(depth=d,mode='het',bytesA=1<<20,bytesB=2<<20,pol='nt')); specs.append(f'hetnt{d}.co:k:256:256:131072')
        build(f'half{d}',stream(depth=d,bytesA=2<<20)); specs.append(f'half{d}.co:k:128:256:131072')
        build(f'q{d}',stream(depth=d,bytesA=2<<20)); specs.append(f'q{d}.co:k:64:256:131072')
        build(f'sh{d}',stream(depth=d,mode='shared',bytesA=512*1024)); specs.append(f'sh{d}.co:k:256:256:131072')
        build(f'pair{d}',stream(depth=d,mode='pair',bytesA=2<<20)); specs.append(f'pair{d}.co:k:256:256:131072')
    print(' '.join(specs))
```

```python
from gen_stream import *
import subprocess
def build(name,src):
    open(name+'.s','w').write(src)
    subprocess.check_call(['clang','-x','assembler','-target','amdgcn-amd-amdhsa','-mcpu=gfx950',name+'.s','-o',name+'.co'])
EPI2='''
  s_nop 7
  s_nop 7
  s_memtime s[40:41]
  s_waitcnt vmcnt(0) lgkmcnt(0)
  s_barrier
  s_memrealtime s[32:33]
  s_waitcnt lgkmcnt(0)
  s_sub_u32 s40, s40, s38
  v_mov_b32 v4, s30
  v_mov_b32 v5, s31
  v_mov_b32 v6, s32
  v_mov_b32 v7, s33
  v_mov_b32 v10, s40
  v_mov_b32 v11, 0
  s_lshl_b32 s34, s2, 5
  v_mov_b32 v8, s34
  v_cmp_eq_u32 vcc, 0, v0
  s_and_saveexec_b64 s[36:37], vcc
  s_cbranch_execz L_end
  buffer_store_dwordx4 v[4:7], v8, s[12:15], 0 offen
  buffer_store_dwordx2 v[10:11], v8, s[12:15], 0 offen offset:16
L_end:
  s_endpgm
'''
def mf(n, loop=1, extra=None, every=0):
    s=HDR+PRO
    s+='  v_lshlrev_b32 v1, 4, v3\n  s_mov_b32 s21, 0\n s_lshl_b32 s25, s20, 10\n s_mov_b32 m0, s25\n s_mul_i32 s21, s2, 65536\n'
    for i in range(16,48): s+=f'  v_mov_b32 v{i}, 0\n'
    s+='  s_memtime s[38:39]\n  s_waitcnt lgkmcnt(0)\n'
    s+=f'  s_mov_b32 s23, {loop}\nL_loop:\n'
    k=0
    for i in range(n):
        a=(i%4)*4
        s+=f'  v_mfma_f32_16x16x32_bf16 a[{a}:{a+3}], v[16:19], v[20:23], a[{a}:{a+3}]\n'
        if extra and every and (i%every)==every-1:
            s+=extra(k); k+=1
    s+='  s_sub_u32 s23, s23, 1\n  s_cmp_lg_u32 s23, 0\n  s_cbranch_scc1 L_loop\n'
    s+=EPI2+footer(vg=512,wg=256).replace('.amdhsa_accum_offset 256','.amdhsa_accum_offset 256')
    return s
if __name__=="__main__":
  specs=[]
  build('mf_line',mf(4096,1)); specs.append('mf_line.co:k:256:256:131072')
  build('mf_loop',mf(64,64)); specs.append('mf_loop.co:k:256:256:131072')
  dma=lambda k: f'  buffer_load_dwordx4 v1, s[8:11], s21 offen offset:{(k%4)*1024} lds\n' + ('  s_waitcnt vmcnt(24)\n' if k%4==3 else '')
  for ev in (2,3,4,6,8):
      build(f'mf_dma{ev}',mf(96,32,dma,ev)); specs.append(f'mf_dma{ev}.co:k:256:256:131072')
  rd=lambda k: f'  ds_read_b64_tr_b16 v[{24+(k%8)*2}:{25+(k%8)*2}], v1 offset:{(k%8)*1024}\n' + ('  s_waitcnt lgkmcnt(4)\n' if k%4==3 else '')
  for ev in (1,2):
      build(f'mf_rd{ev}',mf(96,32,rd,ev)); specs.append(f'mf_rd{ev}.co:k:256:256:131072')
  va=lambda k: ''.join(f'  v_fma_f32 v{24+((k*2+z)%16)}, v16, v17, v18\n' for z in range(2))
  build('mf_va2',mf(96,32,va,1)); specs.append('mf_va2.co:k:256:256:131072')
  va=lambda k: ''.join(f'  v_fma_f32 v{24+((k*3+z)%16)}, v16, v17, v18\n' for z in range(3))
  build('mf_va3',mf(96,32,va,1)); specs.append('mf_va3.co:k:256:256:131072')
  va=lambda k: f'  v_exp_f32 v{24+(k%16)}, v16\n'
  build('mf_exp1',mf(96,32,va,1)); specs.append('mf_exp1.co:k:256:256:131072')
  va=lambda k: f'  v_pk_fma_f32 v[{24+(k%8)*2}:{25+(k%8)*2}], v[16:17], v[18:19], v[20:21]\n'
  build('mf_pk1',mf(96,32,va,1)); specs.append('mf_pk1.co:k:256:256:131072')
  va=lambda k: ''.join(f'  v_pk_fma_f32 v[{24+((2*k+z)%8)*2}:{25+((2*k+z)%8)*2}], v[16:17], v[18:19], v[20:21]\n' for z in range(2))
  build('mf_pk2',mf(96,32,va,1)); specs.append('mf_pk2.co:k:256:256:131072')
  print(' '.join(specs))
```

```python
from gen_stream import *
from gen3 import build
specs=[]
for nm,pol in (('nt','nt'),('sc1nt','sc1 nt'),('sc0nt','sc0 nt'),('sc01nt','sc0 sc1 nt'),('sc1','sc1'),('sc01','sc0 sc1')):
    build(f'pol_{nm}',stream(depth=16,pol=pol)); specs.append(f'pol_{nm}.co:k:256:256:131072')
print(' '.join(specs))
```
